```python
import torch

def _softmax(x, axis=-1):
    return torch.softmax(x, dim=axis)
def _gelu(x):
    return torch.nn.functional.gelu(x, approximate="tanh")
def _silu(x):
    return torch.nn.functional.silu(x)
def _sigmoid(x):
    return torch.sigmoid(x)
def _layernorm(x, axis=-1, eps=1e-5):
    m = x.mean(dim=axis, keepdim=True)
    v = x.var(dim=axis, keepdim=True, unbiased=False)
    return (x - m) / torch.sqrt(v + eps)
def _scatter_add(tgt, idx, src, axis=0):
    return tgt.clone().index_add_(axis, idx, src)
def _segment_sum(src, seg, n):
    out = torch.zeros((n,) + src.shape[1:], dtype=src.dtype)
    return out.index_add_(0, seg, src)
def _pad(x, pw):
    flat = tuple(v for pair in reversed(pw) for v in pair)
    return torch.nn.functional.pad(x, flat)

kernel_name = 'standalone__ssm_conv_s4d__prompt'

def setup_inputs():

    _w = (lambda a: (lambda t: t.to(torch.bfloat16) if t.is_floating_point() else t)(torch.as_tensor(a)))
    Bsz, L, D, N = 1, 2048, 512, 128
    return {
        "u": _w((lambda *s: torch.randn(*s, dtype=torch.bfloat16) * 0.05)(Bsz, L, D)),
        "log_A_real": _w((lambda *s: torch.randn(*s, dtype=torch.bfloat16) * 6.4)(D, N) * 0.5),
        "A_imag": _w((lambda *s: torch.randn(*s, dtype=torch.bfloat16) * 0.05)(D, N) * 3.14),
        "C_real": _w((lambda *s: torch.randn(*s, dtype=torch.bfloat16) * 0.05)(D, N) / N ** 0.5),
        "C_imag": _w((lambda *s: torch.randn(*s, dtype=torch.bfloat16) * 0.05)(D, N) / N ** 0.5),
        "log_dt": _w((lambda *s: torch.randn(*s, dtype=torch.bfloat16) * 0.05)(D) * 0.5 - 4.0),
        "D_skip": _w((lambda *s: torch.randn(*s, dtype=torch.bfloat16) * 0.05)(D)),
    }

def reference(u, log_A_real, A_imag, C_real, C_imag, log_dt, D_skip):
    L = u.shape[1]
    dt = torch.exp(log_dt)
    A = -torch.exp(log_A_real) + 1j * A_imag
    C = (C_real + 1j * C_imag) * dt[:, None]
    pos = (lambda x, dt: x.to(dt))(torch.arange(L), log_dt.dtype)
    P = torch.exp((A * dt[:, None])[:, :, None] * pos[None, None, :])
    K = 2.0 * torch.einsum("dn,dnl->dl", C, P).real
    L2 = 2 * L
    u_t = (lambda x, *d: x.permute(*d))(u, 0, 2, 1)
    Kf = (lambda x, *a, **k: torch.fft.rfft(x.float(), *a, **k))(K, L2)
    Uf = (lambda x, *a, **k: torch.fft.rfft(x.float(), *a, **k))(u_t, L2)
    y = (lambda x, *a, **k: torch.fft.irfft(x, *a, **k).to(torch.bfloat16))(Uf * Kf[None, :, :], L2)[:, :, :L]
    y = (lambda x, *d: x.permute(*d))(y, 0, 2, 1)
    return y + u * D_skip[None, None, :]
```

```python
HEADER = """; @launch grid=({gx},1,1) block=({bx},1,1) lds={lds}
.amdgcn_target "amdgcn-amd-amdhsa--gfx950"
.text
.globl standalone__ssm_conv_s4d__prompt_kernel
.p2align 8
.type standalone__ssm_conv_s4d__prompt_kernel,@function
standalone__ssm_conv_s4d__prompt_kernel:
"""
FOOTER = """s_endpgm
.section .rodata,"a"
.p2align 6
.amdhsa_kernel standalone__ssm_conv_s4d__prompt_kernel
  .amdhsa_next_free_vgpr {vgpr}
  .amdhsa_next_free_sgpr {sgpr}
  .amdhsa_accum_offset {acc}
  .amdhsa_group_segment_fixed_size 0
  .amdhsa_kernarg_size 80
  .amdhsa_user_sgpr_count 2
  .amdhsa_user_sgpr_kernarg_segment_ptr 1
  .amdhsa_system_sgpr_workgroup_id_x 1
.end_amdhsa_kernel
"""
class Asm:
    def __init__(self):
        self.lines = []
    def __call__(self, s=""):
        for l in s.strip("\n").split("\n"):
            self.lines.append("    " + l.strip() if not l.strip().endswith(":") else l.strip())
    def text(self):
        return "\n".join(self.lines) + "\n"
def wrap(body, gx, bx, lds, vgpr, sgpr=102, acc=None):
    acc = acc or ((vgpr + 3)//4*4)
    return HEADER.format(gx=gx, bx=bx, lds=lds) + body + FOOTER.format(vgpr=vgpr, sgpr=sgpr, acc=acc)
```

```python
import sys, math, struct
from asmlib import *

def f32(x): return "0x%08x" % struct.unpack("<I", struct.pack("<f", x))[0]
LOG2E = 1.4426950408889634
C_HI = math.floor(LOG2E * 2**15) / 2**15
C2 = (LOG2E - C_HI) * math.log(2.0)
INV2PI = 1.0/(2*math.pi)

TAB, TABS, ROW = 0, 30720, 528
U, US = 61440, 4608
KR, KRS, CP1, RC = 70656, 4736, 2244, 4400
ST1 = 80128
MODE = 60928
LDS_TOTAL = 90368
EXCH, ST2 = 0, 16384
FLAGBASE = 1 << 20
WS2BASE = 4 << 20
NSLOW = 32
XHI = [0,1,2,3,4,5,6,7,128,129,130,131,132,133,134,135,
       256,258,260,262,384,386,388,390,512,516,640,644,768,772,896,900] + [1024+128*k for k in range(8)] + [2048]

class Lds:
    def __init__(self, a): self.a=a; self.n=0; self.tag={}
    def op(self, text, tag=None):
        self.a(text); self.n+=1
        if tag is not None: self.tag[tag]=self.n
    def wait(self, *tags):
        need = max(self.tag[t] for t in tags)
        if getattr(self,'done',0) >= need: return
        k = min(self.n-need, 15)
        self.a(f"s_waitcnt lgkmcnt({k})"); self.done = self.n-k
    def drain(self):
        self.a("s_waitcnt lgkmcnt(0)"); self.done=self.n

def sched(ops, lat=2):
    n=len(ops); last={}; preds=[[] for _ in ops]; readers={}
    for i,(t,d,u,x) in enumerate(ops):
        for r in u:
            if r in last: preds[i].append((last[r], True))
        for r in d:
            if r in last: preds[i].append((last[r], False))
            for j in readers.get(r,[]): preds[i].append((j, False))
        for r in u: readers.setdefault(r,[]).append(i)
        for r in d: last[r]=i; readers[r]=[]
    succ=[[] for _ in ops]
    for i in range(n):
        for p,_ in preds[i]: succ[p].append(i)
    h=[0]*n
    for i in reversed(range(n)):
        h[i]=1+max([h[s]+lat for s in succ[i]], default=0)
    done={}; out=[]; t=0; rem=set(range(n))
    while rem:
        ready=[i for i in rem if all(p in done for p,_ in preds[i])]
        def rt(i): return max([done[p]+(lat+ops[p][3] if raw else 1) for p,raw in preds[i]], default=0)
        now=[i for i in ready if rt(i)<=t]
        if now: i=max(now,key=lambda i:(h[i],-i))
        else:   i=min(ready,key=lambda i:(rt(i),-h[i]))
        if out and any(raw and ops[p][3]>0 and done[p]==t-1 for p,raw in preds[i]):
            out.append("s_nop 0"); t+=1
        out.append(ops[i][0]); done[i]=t; t+=1; rem.remove(i)
    return out

def R(b,n=1): return [f"v{b+i}" for i in range(n)]
def op(text,d,u,x=0): return (text,d,u,x)
def cmul(z,x,w,t):
    return [op(f"v_pk_mul_f32 v[{t}:{t+1}], v[{x}:{x+1}], v[{w}:{w+1}] op_sel_hi:[1,0]", R(t,2), R(x,2)+R(w,2)),
            op(f"v_pk_fma_f32 v[{z}:{z+1}], v[{x}:{x+1}], v[{w}:{w+1}], v[{t}:{t+1}] op_sel:[1,1,0] op_sel_hi:[0,1,1] neg_lo:[0,1,0]", R(z,2), R(x,2)+R(w,2)+R(t,2))]
def exp_bf16(dst, x, t):
    return [op(f"v_mul_f32 v{t}, s50, {x}", R(t), [x]),
            op(f"v_mul_f32 v{t+1}, s51, {x}", R(t+1), [x]),
            op(f"v_exp_f32 v{t}, v{t}", R(t), R(t), 1),
            op(f"v_fma_f32 v{t}, v{t}, v{t+1}, v{t}", R(t), R(t,2)),
            op(f"v_cvt_pk_bf16_f32 v{t}, v{t}, v{t}", R(t), R(t)),
            op(f"v_lshlrev_b32 v{dst}, 16, v{t}", R(dst), R(t))]
def cexp(w, er, ph, p, t):
    o=[]
    if p!=1:
        o+=[op(f"v_mul_f32 v{t}, {f32(p)}, v{er}", R(t), R(er)), op(f"v_mul_f32 v{t+1}, {f32(p)}, v{ph}", R(t+1), R(ph))]
        e,h=t,t+1
    else: e,h=er,ph
    o+=[op(f"v_exp_f32 v{t}, v{e}", R(t), R(e), 1),
        op(f"v_fract_f32 v{t+1}, v{h}", R(t+1), R(h)),
        op(f"v_cos_f32 v{w}, v{t+1}", R(w), R(t+1), 1),
        op(f"v_sin_f32 v{w+1}, v{t+1}", R(w+1), R(t+1), 1),
        op(f"v_pk_mul_f32 v[{w}:{w+1}], v[{w}:{w+1}], v[{t}:{t+1}] op_sel_hi:[1,0]", R(w,2), R(w,2)+R(t))]
    return o
def setup_ops(vLA, vAI, vDT, vER, vPH, t):
    o = exp_bf16(vDT, "v%d"%vDT, t) + exp_bf16(vER, "v%d"%vLA, t+2)
    o += [op(f"v_mul_f32 v{vER}, v{vER}, v{vDT}", R(vER), R(vER)+R(vDT)),
          op(f"v_mul_f32 v{vPH}, v{vAI}, v{vDT}", R(vPH), R(vAI)+R(vDT)),
          op(f"v_mul_f32 v{vER}, {f32(-LOG2E)}, v{vER}", R(vER), R(vER)),
          op(f"v_mul_f32 v{vPH}, {f32(INV2PI)}, v{vPH}", R(vPH), R(vPH))]
    return o

def gen(fn, stamps=False, prefetch=True, opts=None):
    opts = opts or {}
    a = Asm()
    nst = {'c':0,'h':0}
    def stamp(role):
        if stamps:
            i = nst[role]; nst[role]+=1
            a(f"s_memtime s[{84+2*i}:{85+2*i}]")
            assert 85+2*i <= 99
    def dump_stamps(role, lab):
        if not stamps: return
        n = nst[role]
        a(f"""
        s_memrealtime s[100:101]
        s_waitcnt lgkmcnt(0)
        s_and_b32 s3, s78, 3
        s_cmp_lg_u32 s3, 0
        s_cbranch_scc1 {lab}
        s_add_u32 s3, s2, {256 if role=='h' else 0}
        s_lshl_b32 s3, s3, 7
        s_add_u32 s20, s20, s3
        s_addc_u32 s21, s21, 0
        v_mov_b32 v2, 0
        s_mov_b64 exec, 1
        """)
        regs = [80,82]+[84+2*i for i in range(n)]
        for i,r in enumerate(regs):
            a(f"v_mov_b32 v4, s{r}\nv_mov_b32 v5, s{r+1}\nglobal_store_dwordx2 v2, v[4:5], s[20:21] offset:{8*i}\ns_nop 1")
        a(f"v_mov_b32 v4, s100\nv_mov_b32 v5, s101\nglobal_store_dwordx2 v2, v[4:5], s[20:21] offset:112\ns_nop 1")
        a(f"v_mov_b32 v4, s62\nv_mov_b32 v5, s63\nglobal_store_dwordx2 v2, v[4:5], s[20:21] offset:120\ns_waitcnt vmcnt(0)\n{lab}:")
    if stamps: a("s_memrealtime s[80:81]\ns_memtime s[82:83]")
    a(f"""
    s_load_dwordx16 s[64:79], s[0:1], 0
    s_load_dwordx2 s[20:21], s[0:1], 72
    s_cmp_ge_u32 s2, 256
    s_cbranch_scc1 L_end
    v_lshrrev_b32 v2, 6, v0
    v_and_b32 v3, 63, v0
    s_and_b32 s28, s2, 7
    s_lshr_b32 s29, s2, 3
    v_readfirstlane_b32 s24, v2
    s_getreg_b32 s25, hwreg(HW_REG_XCC_ID, 0, 4)
    s_lshl_b32 s31, s28, 7            ; 128x
    s_lshl_b32 s30, s29, 16
    s_add_u32 s30, s30, s31
    s_and_b32 s26, s24, 3             ; w&3
    s_lshr_b32 s27, s26, 1            ; ch
    s_and_b32 s33, s26, 1             ; P / half
    s_lshl_b32 s34, s28, 6
    s_lshl_b32 s35, s29, 1
    s_add_u32 s34, s34, s35           ; 64x+2i
    s_lshl_b32 s35, s34, 1
    s_add_u32 s34, s34, s27
    s_lshl_b32 s34, s34, 1
    s_add_u32 s34, s34, s33
    s_lshl_b32 s34, s34, 7
    v_lshl_add_u32 v1, v3, 1, s34
    s_lshl_b32 s32, s28, 13
    s_add_u32 s32, s32, {FLAGBASE}
    s_mul_i32 s38, s27, {TABS}
    s_lshl_b32 s39, s33, 8
    s_add_u32 s38, s38, s39
    s_mov_b32 m0, s38
    s_lshl_b32 s39, s29, 2
    s_add_u32 s39, s39, s26
    s_lshl_b32 s39, s39, 3
    s_mov_b32 s50, {f32(C_HI)}
    s_mov_b32 s51, {f32(C2)}
    v_mov_b32 v16, 0
    v_mov_b32 v17, 0
    v_mov_b32 v18, 0
    v_mov_b32 v19, 0
    s_mov_b32 s18, 8192
    s_mov_b32 s19, 0x20000
    s_mov_b32 s14, 0x200000
    s_mov_b32 s15, 0x20000
    s_cmp_ge_u32 s24, 4
    s_cbranch_scc1 L_helper
    """)
    a(f"""
    s_waitcnt lgkmcnt(0)
    global_load_short_d16_hi v16, v1, s[66:67]
    global_load_short_d16_hi v17, v1, s[68:69]
    s_load_dword s40, s[74:75], s35
    global_load_short_d16_hi v18, v1, s[70:71]
    global_load_short_d16_hi v19, v1, s[72:73]
    s_add_u32 s16, s20, s32
    s_addc_u32 s17, s21, 0
    s_load_dwordx2 s[36:37], s[16:17], 4096
    s_mov_b32 s12, s78
    s_mov_b32 s13, s79
    s_mov_b32 s78, s24
    """)
    stamp('c')
    a(f"""
    v_and_b32 v4, 15, v3              ; r / c / col
    v_lshrrev_b32 v5, 4, v3           ; g
    s_mul_i32 s41, s27, {KRS}
    s_add_u32 s41, s41, {KR}
    s_mul_i32 s42, s27, {US}
    s_add_u32 s42, s42, {U}
    s_mul_i32 s43, s27, {TABS}
    v_mul_u32_u24 v6, {ROW}, v4
    v_lshl_add_u32 v6, v5, 4, v6
    v_add_u32 v6, s43, v6
    ; vB (v7)
    v_lshlrev_b32 v7, 5, v4
    v_lshl_add_u32 v7, v5, 4, v7
    v_add_u32 v7, s42, v7
    v_and_b32 v20, 1, v4
    v_mul_u32_u24 v8, {CP1+2}, v20
    v_lshl_add_u32 v8, v5, 4, v8
    v_lshlrev_b32 v21, 1, v4
    v_sub_u32 v8, v8, v21              ; (r&1)*CP1 + 16g - 2(r&~1)
    s_lshl_b32 s44, s33, 6
    s_sub_u32 s44, s41, s44
    s_add_u32 s44, s44, {2*1040 - 64*14}
    v_add_u32 v8, s44, v8
    v_add_u32 v9, -1024, v8
    v_add_u32 v10, -128, v9
    v_lshlrev_b32 v11, 4, v5
    v_lshlrev_b32 v21, 2, v4
    v_sub_u32 v11, v11, v21
    s_add_u32 s44, s41, {RC + 256 - 192}
    v_add_u32 v11, s44, v11
    v_lshlrev_b32 v21, 3, v5
    v_sub_u32 v21, v21, v4             ; 8g - r
    v_add_u32 v22, 16, v21             ; h=4: 20-8+4
    v_add_u32 v23, 15, v21             ; h=3
    v_min_u32 v22, 31, v22
    v_min_u32 v23, 31, v23
    s_mov_b32 s44, {0x1ff<<20}
    s_mov_b32 s45, {0x7f<<20}
    v_lshrrev_b32 v22, v22, s44
    v_lshrrev_b32 v23, v23, s45
    s_movk_i32 s46, 0x3f80
    """)
    BOX = 224
    for ty in range(2):
        for e in range(4):
            d = BOX+4*ty+e
            a(f"v_bfe_u32 v{d}, v{22+ty}, {2*e}, 2\nv_lshl_or_b32 v{d}, v{d}, 15, v{d}\nv_and_b32 v{d}, 0x10001, v{d}\nv_mul_u32_u24 v{d}, s46, v{d}")
    a(f"""
    s_cmp_eq_u32 s33, 0
    s_cbranch_scc0 L_addrO
    v_lshlrev_b32 v12, 4, v4            ; 16col
    v_lshrrev_b32 v21, 1, v5
    v_lshl_add_u32 v12, v21, 8, v12
    v_and_b32 v21, 1, v5
    v_lshl_add_u32 v12, v21, 3, v12     ; 2*p0
    s_add_u32 s44, s41, {2*1053}
    v_sub_u32 v12, s44, v12
    v_lshlrev_b32 v13, 1, v4
    v_lshl_add_u32 v13, v5, 7, v13
    s_add_u32 s44, s41, {RC + 260 - 96}
    v_sub_u32 v13, s44, v13
    v_and_b32 v14, 7, v3
    v_lshlrev_b32 v14, 1, v14
    v_lshrrev_b32 v21, 3, v3
    v_mul_u32_u24 v21, {CP1+2}, v21
    s_add_u32 s44, s41, 56
    v_add3_u32 v14, v14, v21, s44
    s_branch L_addrD
    L_addrO:
    v_max_u32 v21, 1, v5
    v_add_u32 v21, v21, v5              ; g + max(g,1)
    v_lshlrev_b32 v21, 8, v21
    v_lshl_add_u32 v21, v4, 4, v21
    s_add_u32 s44, s41, {2*1050 - 2*256 + 256}
    v_sub_u32 v12, s44, v21
    v_add_u32 v13, {CP1}, v12
    L_addrD:
    v_lshrrev_b32 v15, 2, v4
    v_and_b32 v21, 1, v5
    v_lshl_add_u32 v15, v21, 2, v15
    v_lshlrev_b32 v15, 16, v15
    v_and_b32 v21, 3, v4
    v_lshrrev_b32 v22, 1, v5
    v_lshl_add_u32 v21, v22, 2, v21
    v_lshl_add_u32 v15, v21, 4, v15
    s_lshl_b32 s47, s29, 11
    s_add_u32 s47, s47, s31
    s_lshl_b32 s44, s27, 10
    s_add_u32 s47, s47, s44
    s_lshl_b32 s44, s33, 20
    s_add_u32 s47, s47, s44
    s_add_u32 s48, s47, 0x80000
    s_lshl_b32 s44, s26, 12
    v_lshl_add_u32 v232, v3, 4, s44
    v_xor_b32 v233, 0x1000, v232
    v_lshlrev_b32 v235, 2, v3
    s_waitcnt lgkmcnt(0)
    s_lshl_b32 s44, s40, 16
    s_and_b32 s45, s40, 0xffff0000
    s_cmp_eq_u32 s27, 0
    s_cselect_b32 s44, s44, s45
    v_mov_b32 v20, s44
    s_add_u32 s36, s36, 16
    s_and_b32 s36, s36, -16
    s_waitcnt vmcnt(0)
    """)
    stamp('c')
    ops = setup_ops(16,17,20,21,22,24)
    ops += cexp(28,21,22,1,30) + cexp(32,21,22,128,34)
    ops += [op("v_add_f32 v20, v20, v20", R(20), R(20)),
            op("v_pk_mul_f32 v[40:41], v[18:19], v[20:21] op_sel_hi:[1,0]", R(40,2), R(18,2)+R(20))]
    reg = {}
    nxt = [40]
    def newreg(): r=nxt[0]; nxt[0]+=2; return r
    reg[(0,0)] = newreg()
    tmp = [130+2*i for i in range(8)]; tc=[0]
    def T(): tc[0]+=1; return tmp[tc[0]%8]
    ops += cmul(36,28,28,T())
    for j in range(1,8):
        reg[(j,0)] = newreg()
        ops += cmul(reg[(j,0)], reg[(0,0)], 28, T()) if j==1 else cmul(reg[(j,0)], reg[(j-2,0)], 36, T())
    ops += cmul(38,32,32,T())
    kmax = {0:16,1:1,2:3,3:1,4:7,5:1,6:3,7:1}
    for k in range(1,17):
        for j in range(8):
            if k<=kmax[j]:
                reg[(j,k)] = newreg()
                ops += cmul(reg[(j,k)], reg[(j,k-1)], 32, T()) if k==1 else cmul(reg[(j,k)], reg[(j,k-2)], 38, T())
    assert nxt[0] <= 130, nxt
    ct = [150+i for i in range(8)]
    for row,hi in enumerate(XHI):
        r = reg[(hi%128, hi//128)]; c = ct[row%8]
        ops += [op(f"v_cvt_pk_bf16_f32 v{c}, v{r}, -v{r+1}", R(c), R(r,2)),
                op(f"ds_write_addtid_b32 v{c} offset:{row*ROW}", [], R(c))]
    for l in sched(ops): a(l)
    a("s_waitcnt lgkmcnt(0)")
    stamp('c')
    a("s_barrier")
    a("s_cmp_eq_u32 s33, 0\ns_cbranch_scc0 L_kO")
    for P in range(2):
        if P==1: a("L_kO:")
        L = Lds(a)
        tiles = [0,2] if P==0 else [1]
        YB, XB = 64, 96
        def rd(s):
            L.op(f"ds_read_b128 v[{YB+4*s}:{YB+4*s+3}], v6 offset:{41*ROW+64*s}", ('y',s))
            for ti,t in enumerate(tiles):
                L.op(f"ds_read_b128 v[{XB+32*ti+4*s}:{XB+32*ti+4*s+3}], v6 offset:{16*t*ROW+64*s}", ('x',ti,s))
        ahead = 4 if P==0 else 6
        for s in range(ahead): rd(s)
        for s in range(8):
            for ti,t in enumerate(tiles):
                L.wait(('y',s),('x',ti,s))
                c = "0" if s==0 else f"v[{40+4*ti}:{43+4*ti}]"
                a(f"v_mfma_f32_16x16x32_bf16 v[{40+4*ti}:{43+4*ti}], v[{XB+32*ti+4*s}:{XB+32*ti+4*s+3}], v[{YB+4*s}:{YB+4*s+3}], {c}")
            if s+ahead<8: rd(s+ahead)
        a("s_nop 7")
        if P==0:
            a(f"""
            v_cvt_pk_bf16_f32 v48, v43, v42
            v_cvt_pk_bf16_f32 v49, v41, v40
            v_cvt_pk_bf16_f32 v50, v42, v41
            v_cvt_pk_bf16_f32 v51, v44, v45
            v_cvt_pk_bf16_f32 v52, v46, v47
            ds_write_b64 v12, v[48:49] offset:{CP1+2}
            ds_write_b32 v12, v50 offset:2
            v_readlane_b32 s44, v51, 0
            ds_write_b16 v12, v48
            ds_write_b16_d16_hi v12, v49 offset:6
            s_mov_b32 exec_lo, -2
            s_mov_b32 exec_hi, 1
            ds_write_b16 v13, v51 offset:96
            s_mov_b32 exec_lo, -1
            s_mov_b32 exec_hi, 0
            v_mov_b32 v53, s44
            ds_write_b16_d16_hi v13, v51 offset:64
            ds_write_b16 v13, v52 offset:32
            ds_write_b16_d16_hi v13, v52
            s_mov_b64 exec, 0x7f7f
            ds_write_b16 v14, v53
            s_mov_b64 exec, -1
            """)
        else:
            a(f"""
            v_cvt_pk_bf16_f32 v48, v40, v40
            v_cvt_pk_bf16_f32 v49, v41, v41
            v_cvt_pk_bf16_f32 v50, v41, v40
            v_cvt_pk_bf16_f32 v51, v42, v42
            v_cvt_pk_bf16_f32 v52, v43, v43
            v_cvt_pk_bf16_f32 v53, v43, v42
            v_cvt_pk_bf16_f32 v54, v42, v41
            s_mov_b32 exec_lo, 0
            """)
            for (aa,bb,ba,o) in [(48,49,50,64),(51,52,53,0)]:
                a(f"""
                ds_write_b16 v12, v{bb} offset:{4*o+2}
                ds_write2_b32 v12, v{bb}, v{aa} offset0:{o+1} offset1:{o+2}
                ds_write_b32 v12, v{aa} offset:{4*o+12}
                ds_write_b16 v12, v{aa} offset:{4*o+16}
                ds_write2_b32 v13, v{bb}, v{ba} offset0:{o+1} offset1:{o+2}
                ds_write2_b32 v13, v{aa}, v{aa} offset0:{o+3} offset1:{o+4}
                """)
            a(f"""
            s_mov_b32 exec_lo, -1
            s_mov_b32 exec_hi, 0
            ds_write2_b32 v12, v53, v51 offset0:0 offset1:1
            ds_write_b32 v12, v50 offset:8
            ds_write_b16 v12, v48 offset:12
            ds_write_b16 v13, v53 offset:2
            ds_write2_b32 v13, v51, v54 offset0:1 offset1:2
            ds_write_b32 v13, v48 offset:12
            s_mov_b32 exec_lo, -2
            ds_write_b16 v12, v48 offset:14
            ds_write_b16 v13, v48 offset:16
            s_mov_b64 exec, -1
            """)
        a("s_waitcnt lgkmcnt(0)")
        stamp('c') if P==0 else None
        a("s_barrier")
        stamp('c') if P==0 else None
        ACC=32; BB=[64,96]; AB=[128,148]; UF=168; D1=184; WF=200; KO=208
        L = Lds(a)
        L.op(f"ds_read_b32 v234, v235 offset:{MODE}", 'mode')
        def rdA(k,mu):
            d = AB[k&1]+4*mu
            if mu==4: base,off = 10,0
            else: base,off = (8 if mu<2 else 9), 128*(1-(mu&1))+32*(3-k)
            L.op(f"ds_read2_b32 v[{d}:{d+1}], v{base} offset0:{off} offset1:{off+1}")
            L.op(f"ds_read2_b32 v[{d+2}:{d+3}], v{base} offset0:{off+2} offset1:{off+3}", ('A',k,mu))
        def rdB(k,nu):
            d = BB[k&1]+4*nu; j = 8*nu-(P+2*k)
            L.op(f"ds_read_b128 v[{d}:{d+3}], v7 offset:{480+64*j}", ('B',k,nu))
        def loads(k):
            nmu = 5 if (P==0 and k==0) else 4
            l=[('A',0)]+[('B',n) for n in range(8)]+[('A',m) for m in range(1,nmu)]
            return [(lambda k=k,x=x: rdA(k,x[1]) if x[0]=='A' else rdB(k,x[1])) for x in l]
        def mfmas(k):
            nmu = 5 if (P==0 and k==0) else 4
            l=[(T_,mu) for mu in range(nmu) for T_ in range(mu,8)]
            if k==3:
                first = [4,5,6,7] if P==0 else [0,1,2,3]
                l=[x for x in l if x[0] in first]+[x for x in l if x[0] not in first]
            return l
        aset = [2,3] if P==0 else [0,1]
        seg3_loads=[]
        for ai,aa in enumerate(aset):
            seg3_loads.append(lambda ai=ai,aa=aa: L.op(f"ds_read_b128 v[{UF+8*ai}:{UF+8*ai+3}], v7 offset:{480+512*aa-16}", ('Ue',ai)))
            seg3_loads.append(lambda ai=ai,aa=aa: L.op(f"ds_read_b128 v[{UF+8*ai+4}:{UF+8*ai+7}], v7 offset:{480+512*aa}", ('Uo',ai)))
        for d in range(4-aset[0]):
            def f(d=d):
                L.op(f"ds_read2_b32 v[{KO+4*d}:{KO+4*d+1}], v11 offset0:{16*(3-d)} offset1:{16*(3-d)+1}")
                L.op(f"ds_read2_b32 v[{KO+4*d+2}:{KO+4*d+3}], v11 offset0:{16*(3-d)+2} offset1:{16*(3-d)+3}", ('K',d))
            seg3_loads.append(f)
        first=set()
        def mf(k,T_,mu):
            L.wait(('A',k,mu),('B',k,T_-mu))
            acc=f"v[{ACC+4*T_}:{ACC+4*T_+3}]"
            c = acc if T_ in first else "0"; first.add(T_)
            aa=AB[k&1]+4*mu; bb=BB[k&1]+4*(T_-mu)
            a(f"v_mfma_f32_16x16x32_bf16 {acc}, v[{aa}:{aa+3}], v[{bb}:{bb+3}], {c}")
        pend = loads(0)
        for f in pend[:6]: f()
        pend = pend[6:]
        for k in range(4):
            ml = mfmas(k)
            nxtl = loads(k+1) if k<3 else []
            if k==0: pend = pend + nxtl
            elif k==1: pend = seg3_loads + nxtl
            else: pend = nxtl
            for idx,(T_,mu) in enumerate(ml):
                mf(k,T_,mu)
                npop = 1 if (k==0 or k==1 or idx%2==0) else 0
                for _ in range(npop):
                    if pend: pend.pop(0)()
                if k==2 and idx==1:
                    for ai in range(2):
                        L.wait(('Ue',ai)); a(f"v_mfma_f32_16x16x32_bf16 v[{D1+8*ai}:{D1+8*ai+3}], v[{UF+8*ai}:{UF+8*ai+3}], v[{BOX}:{BOX+3}], 0")
                        L.wait(('Uo',ai)); a(f"v_mfma_f32_16x16x32_bf16 v[{D1+8*ai+4}:{D1+8*ai+7}], v[{UF+8*ai+4}:{UF+8*ai+7}], v[{BOX+4}:{BOX+7}], 0")
                if k==2 and 10<=idx<14:
                    e=idx-10
                    for ai in range(2): a(f"v_cvt_pk_bf16_f32 v{WF+4*ai+e}, v{D1+8*ai+e}, v{D1+8*ai+4+e}")
                if k==2 and idx==17:
                    for ai,aa in enumerate(aset):
                        for tau in range(aa,4):
                            d=tau-aa; L.wait(('K',d))
                            acc=f"v[{ACC+4*(4+tau)}:{ACC+4*(4+tau)+3}]"
                            a(f"v_mfma_f32_16x16x32_bf16 {acc}, v[{WF+4*ai}:{WF+4*ai+3}], v[{KO+4*d}:{KO+4*d+3}], {acc}")
                if k==3:
                    ngive = 16 if P==0 else 10
                    give = [4,5,6,7] if P==0 else [0,1,2,3]
                    st = ngive+4
                    if st <= idx < st+4:
                        t=idx-st
                        L.op(f"ds_write_b128 v232, v[{ACC+4*give[t]}:{ACC+4*give[t]+3}] offset:{1024*t}")
            while pend: pend.pop(0)()
        if P==0:
            pass
        a("s_waitcnt lgkmcnt(0)")
        stamp('c') if P==0 else None
        a("s_barrier")
        own = [0,1,2,3] if P==0 else [4,5,6,7]
        for t in range(4): a(f"ds_read_b128 v[{64+4*t}:{67+4*t}], v233 offset:{1024*t}")
        a("v_readfirstlane_b32 s49, v234")
        for t in range(4):
            b=ACC+4*own[t]
            a(f"""
            s_waitcnt lgkmcnt({3-t})
            v_pk_add_f32 v[{b}:{b+1}], v[{b}:{b+1}], v[{64+4*t}:{65+4*t}]
            v_pk_add_f32 v[{b+2}:{b+3}], v[{b+2}:{b+3}], v[{66+4*t}:{67+4*t}]
            v_cvt_pk_bf16_f32 v{80+2*t}, v{b}, v{b+1}
            v_cvt_pk_bf16_f32 v{81+2*t}, v{b+2}, v{b+3}
            """)
        if P==0: a("s_branch L_cout")
    a(f"""
    L_cout:
    s_or_b32 s44, s36, s25
    s_or_b32 s45, s36, 15
    v_mov_b32 v25, s37
    v_permlane16_swap_b32 v80, v82
    v_permlane16_swap_b32 v81, v83
    v_mov_b32 v26, 0
    s_cmp_lg_u32 s49, 0
    v_permlane16_swap_b32 v84, v86
    v_permlane16_swap_b32 v85, v87
    s_cbranch_scc1 L_cslow
    v_mov_b32 v24, s44
    buffer_store_dwordx4 v[80:83], v15, s[12:15], s47 offen
    buffer_store_dwordx4 v[84:87], v15, s[12:15], s48 offen
    s_mov_b64 exec, 1
    s_waitcnt vmcnt(0)
    buffer_store_dwordx2 v[24:25], v26, s[16:19], s39 offen offset:3072
    """)
    stamp('c')
    dump_stamps('c', "L_cd")
    a(f"""
    s_endpgm
    L_cslow:
    s_add_u32 s12, s20, {WS2BASE}
    s_addc_u32 s13, s21, 0
    v_mov_b32 v24, s45
    buffer_store_dwordx4 v[80:83], v15, s[12:15], s47 offen sc0 sc1
    buffer_store_dwordx4 v[84:87], v15, s[12:15], s48 offen sc0 sc1
    s_mov_b64 exec, 1
    s_waitcnt vmcnt(0)
    buffer_store_dwordx2 v[24:25], v26, s[16:19], s39 offen offset:2048 sc0 sc1
    s_endpgm
    """)
    a(f"""
    L_helper:
    s_setprio 2
    v_lshrrev_b32 v4, 3, v3       ; rho
    v_and_b32 v5, 7, v3           ; o
    s_lshl_b32 s44, s26, 14
    v_lshlrev_b32 v6, 11, v4
    v_lshl_add_u32 v6, v5, 4, v6
    v_add_u32 v6, s44, v6
    s_mov_b32 s10, 0x200000
    s_mov_b32 s11, 0x20000
    v_lshl_add_u32 v7, v5, 4, s31
    s_waitcnt lgkmcnt(0)
    s_mov_b32 s8, s64
    s_mov_b32 s9, s65
    buffer_load_dwordx4 v[8:11], v6, s[8:11], s30 offen
    buffer_load_dwordx4 v[12:15], v6, s[8:11], s30 offen offset:1024
    s_add_u32 s16, s20, s32
    s_addc_u32 s17, s21, 0
    s_load_dwordx2 s[36:37], s[16:17], 4096
    s_load_dword s40, s[74:75], s35
    global_load_short_d16_hi v16, v1, s[66:67]
    global_load_short_d16_hi v17, v1, s[68:69]
    global_load_dwordx4 v[60:63], v7, s[76:77]
    s_mov_b32 s12, s78
    s_mov_b32 s13, s79
    s_mov_b32 s78, s24
    v_lshlrev_b32 v59, 4, v3
    """)
    npf = 0
    if prefetch:
        a("""
        buffer_load_dword v56, v59, s[16:19], 0 offen sc1
        buffer_load_dword v57, v59, s[16:19], 0 offen offset:3072 sc1
        """); npf = 2
    stamp('h')
    a(f"""
    v_and_b32 v20, 0xff, v0
    v_lshrrev_b32 v21, 7, v20
    v_mul_u32_u24 v21, {US}, v21
    v_and_b32 v22, 127, v20
    v_lshl_add_u32 v21, v22, 2, v21
    v_mov_b32 v24, 0
    v_mov_b32 v25, 0
    v_mov_b32 v26, 0
    v_mov_b32 v27, 0
    v_lshlrev_b32 v22, 4, v20
    ds_write_b32 v21, v24 offset:{U}
    v_add_u32 v22, {KR}, v22
    v_cmp_gt_u32 vcc, {(2*KRS-8192)//16}, v20
    ds_write_b128 v22, v[24:27]
    ds_write_b128 v22, v[24:27] offset:4096
    s_and_saveexec_b64 s[44:45], vcc
    ds_write_b128 v22, v[24:27] offset:8192
    s_mov_b64 exec, -1
    s_mul_i32 s44, s26, 2560
    s_add_u32 s44, s44, {ST1}
    v_mul_u32_u24 v28, 320, v5
    v_lshl_add_u32 v28, v4, 3, v28
    v_add_u32 v28, s44, v28
    v_lshrrev_b32 v29, 2, v3
    v_and_b32 v30, 3, v3
    v_mul_u32_u24 v31, 80, v29
    v_lshl_add_u32 v31, v30, 4, v31
    v_add_u32 v31, s44, v31
    v_lshlrev_b32 v29, 11, v29
    v_lshl_add_u32 v29, v30, 4, v29
    s_lshl_b32 s41, s27, 10
    s_lshl_b32 s42, s33, 6
    s_add_u32 s41, s41, s42
    s_add_u32 s41, s41, s30
    s_add_u32 s42, s41, 32768
    v_lshrrev_b32 v58, 1, v4
    v_lshlrev_b32 v58, 16, v58
    v_and_b32 v30, 1, v4
    v_lshl_add_u32 v58, v30, 10, v58
    v_lshl_add_u32 v58, v5, 4, v58
    s_lshl_b32 s46, s29, 11
    s_add_u32 s46, s46, s31
    s_lshl_b32 s47, s26, 19
    s_add_u32 s46, s46, s47
    s_add_u32 s47, s46, 0x40000
    s_waitcnt lgkmcnt(0)
    s_lshl_b32 s44, s40, 16
    s_and_b32 s45, s40, 0xffff0000
    s_cmp_eq_u32 s27, 0
    s_cselect_b32 s44, s44, s45
    v_mov_b32 v20, s44
    s_add_u32 s36, s36, 16
    s_and_b32 s36, s36, -16
    s_or_b32 s52, s36, s25
    s_mov_b32 s53, s37
    v_mov_b32 v54, s52
    v_mov_b32 v55, s37
    s_waitcnt vmcnt({3+npf})
    """)
    stamp('h')
    for j in range(4): a(f"ds_write2_b32 v28, v{8+j}, v{12+j} offset0:{20*j} offset1:{20*j+1}")
    a(f"""
    s_waitcnt lgkmcnt(0)
    ds_read_b128 v[32:35], v31
    ds_read_b128 v[36:39], v31 offset:1280
    s_waitcnt lgkmcnt(1)
    buffer_store_dwordx4 v[32:35], v29, s[12:15], s41 offen
    s_waitcnt lgkmcnt(0)
    buffer_store_dwordx4 v[36:39], v29, s[12:15], s42 offen
    s_waitcnt vmcnt({2+npf+1})
    """)
    ops = setup_ops(16,17,20,21,22,24) + cexp(64,21,22,8,30)
    yr = {1:64}
    tc[0]=0
    tmp = [110+2*i for i in range(4)]
    def T(): tc[0]+=1; return tmp[tc[0]%4]
    for c in range(2,16):
        yr[c]=64+2*(c-1)
        if c==2: ops+=cmul(yr[2],64,64,T())
        elif c==3: ops+=cmul(yr[3],yr[2],64,T())
        elif c==4: ops+=cmul(yr[4],yr[2],yr[2],T())
        else: ops+=cmul(yr[c],yr[c-4],yr[4],T())
    ops += [op("v_mov_b32 v120, 0x3f80", R(120), []), op(f"ds_write_addtid_b32 v120 offset:{41*ROW}", [], R(120))]
    for c in range(1,16):
        t=121+c%6
        ops += [op(f"v_cvt_pk_bf16_f32 v{t}, v{yr[c]}, v{yr[c]+1}", R(t), R(yr[c],2)), op(f"ds_write_addtid_b32 v{t} offset:{(41+c)*ROW}", [], R(t))]
    for l in sched(ops): a(l)
    a(f"""
    v_mov_b32 v26, 0
    s_mov_b64 exec, 1
    s_waitcnt vmcnt(0)
    buffer_store_dwordx2 v[54:55], v26, s[16:19], s39 offen
    s_mov_b64 exec, -1
    s_waitcnt lgkmcnt(0)
    """)
    stamp('h')
    a(f"""
    s_barrier
    s_mov_b32 s62, 0
    s_mov_b32 s49, 0
    L_poll1:
    buffer_load_dwordx4 v[40:43], v59, s[16:19], 0 offen sc1
    s_add_u32 s62, s62, 1
    s_waitcnt vmcnt(0)
    v_cmp_ne_u64 vcc, s[52:53], v[40:41]
    v_cmp_ne_u64 s[44:45], s[52:53], v[42:43]
    s_or_b64 vcc, vcc, s[44:45]
    s_cbranch_vccz L_ok1
    s_cmp_lt_u32 s62, {NSLOW}
    s_cbranch_scc1 L_poll1
    s_cbranch_scc0 L_slow1
    L_ok1:
    """)
    stamp('h')
    a(f"""
    buffer_load_dwordx4 v[40:43], v58, s[12:15], s46 offen sc1
    buffer_load_dwordx4 v[44:47], v58, s[12:15], s47 offen sc1
    s_mov_b32 s44, 0x05040100
    s_mov_b32 s45, 0x07060302
    s_lshl_b32 s43, s26, 10
    s_add_u32 s43, s43, {U+512}
    v_lshlrev_b32 v56, 6, v4
    v_lshl_add_u32 v56, v5, 3, v56
    v_add_u32 v56, s43, v56
    v_mov_b32 v52, s49
    v_lshlrev_b32 v53, 2, v3
    ds_write_b32 v53, v52 offset:{MODE}
    """)
    for k in range(2):
        b=40+4*k
        a(f"""
        s_waitcnt vmcnt({1-k})
        v_perm_b32 v48, v{b+1}, v{b}, s44
        v_perm_b32 v49, v{b+3}, v{b+2}, s44
        v_perm_b32 v50, v{b+1}, v{b}, s45
        v_perm_b32 v51, v{b+3}, v{b+2}, s45
        ds_write_b64 v56, v[48:49] offset:{512*k}
        ds_write_b64 v56, v[50:51] offset:{US+512*k}
        """)
    a("s_waitcnt lgkmcnt(0)")
    stamp('h')
    a("s_barrier\ns_setprio 0")
    for j in range(4):
        a(f"v_lshlrev_b32 v{80+2*j}, 16, v{60+j}\nv_and_b32 v{81+2*j}, 0xffff0000, v{60+j}")
    for rw in range(2):
        for j in range(4):
            s=64+8*rw+2*j; u_=8+4*rw+j
            a(f"""
            v_lshlrev_b32 v{s}, 16, v{u_}
            v_and_b32 v{s+1}, 0xffff0000, v{u_}
            v_pk_mul_f32 v[{s}:{s+1}], v[{s}:{s+1}], v[{80+2*j}:{81+2*j}]
            v_cvt_pk_bf16_f32 v{s+1}, v{s}, v{s+1}
            v_lshlrev_b32 v{s}, 16, v{s+1}
            v_and_b32 v{s+1}, 0xffff0000, v{s+1}
            """)
    a(f"""
    ; T2 addrs
    s_lshl_b32 s44, s26, 14
    v_lshlrev_b32 v57, 10, v4
    v_lshl_add_u32 v57, v5, 4, v57
    v_add_u32 v57, s44, v57
    s_add_u32 s43, s30, 8192
    s_mul_i32 s44, s26, 2080
    s_add_u32 s44, s44, {ST2}
    v_lshlrev_b32 v58, 7, v4
    v_and_b32 v56, 3, v5
    v_lshl_add_u32 v58, v56, 5, v58
    v_lshrrev_b32 v56, 2, v5
    v_lshl_add_u32 v58, v56, 4, v58
    v_add_u32 v58, s44, v58
    s_lshl_b32 s44, s26, 5
    s_add_u32 s44, s44, {ST2}
    v_mul_u32_u24 v56, 1040, v5
    v_lshl_add_u32 v56, v4, 2, v56
    v_add_u32 v56, s44, v56
    s_mov_b32 s8, s12
    s_mov_b32 s9, s13
    s_movk_i32 s48, 3072
    s_cmp_eq_u32 s49, 0
    s_cbranch_scc1 L_fast2
    s_add_u32 s8, s20, {WS2BASE}
    s_addc_u32 s9, s21, 0
    s_movk_i32 s48, 2048
    s_or_b32 s52, s36, 15
    L_fast2:
    s_mov_b32 s63, 0
    s_barrier
    s_setprio 2
    L_poll2:
    buffer_load_dwordx4 v[40:43], v59, s[16:19], s48 offen sc1
    s_add_u32 s63, s63, 1
    s_waitcnt vmcnt(0)
    v_cmp_ne_u64 vcc, s[52:53], v[40:41]
    v_cmp_ne_u64 s[44:45], s[52:53], v[42:43]
    s_or_b64 vcc, vcc, s[44:45]
    s_cbranch_vccz L_ok2
    s_cmp_lt_u32 s63, 100000
    s_cbranch_scc1 L_poll2
    L_ok2:
    """)
    stamp('h')
    a(f"""
    buffer_load_dwordx4 v[40:43], v57, s[8:11], s30 offen sc1
    buffer_load_dwordx4 v[44:47], v57, s[8:11], s43 offen sc1
    s_waitcnt vmcnt(1)
    ds_write_b128 v58, v[40:43]
    s_waitcnt vmcnt(0)
    ds_write_b128 v58, v[44:47] offset:1040
    s_waitcnt lgkmcnt(0)
    s_barrier
    """)
    for j in range(4): a(f"ds_read2_b32 v[{40+2*j}:{41+2*j}], v56 offset0:{64*j} offset1:{64*j+32}")
    for j in range(4):
        t=80+4*j
        a(f"""
        s_waitcnt lgkmcnt({3-j})
        v_lshlrev_b32 v{t}, 16, v{40+2*j}
        v_lshlrev_b32 v{t+1}, 16, v{41+2*j}
        v_and_b32 v{t+2}, 0xffff0000, v{40+2*j}
        v_and_b32 v{t+3}, 0xffff0000, v{41+2*j}
        v_pk_add_f32 v[{t}:{t+1}], v[{t}:{t+1}], v[{64+2*j}:{65+2*j}]
        v_pk_add_f32 v[{t+2}:{t+3}], v[{t+2}:{t+3}], v[{72+2*j}:{73+2*j}]
        v_cvt_pk_bf16_f32 v{48+j}, v{t}, v{t+1}
        v_cvt_pk_bf16_f32 v{52+j}, v{t+2}, v{t+3}
        """)
    a(f"""
    buffer_store_dwordx4 v[48:51], v6, s[12:15], s30 offen
    buffer_store_dwordx4 v[52:55], v6, s[12:15], s30 offen offset:1024
    s_cmp_lg_u32 s39, 0
    s_cbranch_scc1 L_noep
    s_mov_b64 exec, 1
    v_mov_b32 v24, s36
    v_mov_b32 v25, s37
    s_movk_i32 s44, 4096
    buffer_store_dwordx2 v[24:25], v26, s[16:19], s44 offen
    L_noep:
    """)
    stamp('h')
    if stamps: a("s_waitcnt vmcnt(0)"); stamp('h')
    dump_stamps('h', "L_hd")
    a(f"""
    s_endpgm
    L_slow1:
    s_cmp_lg_u32 s62, {NSLOW}
    s_cbranch_scc1 L_slow1b
    buffer_wbl2 sc1
    s_waitcnt vmcnt(0)
    s_mov_b64 exec, 1
    buffer_store_dwordx2 v[54:55], v26, s[16:19], s39 offen offset:1024 sc0 sc1
    s_mov_b64 exec, -1
    L_slow1b:
    buffer_load_dwordx4 v[40:43], v59, s[16:19], 0 offen offset:1024 sc1
    s_waitcnt vmcnt(0)
    v_cmp_ne_u64 s[54:55], s[52:53], v[40:41]
    v_cmp_ne_u64 s[56:57], s[52:53], v[42:43]
    v_and_b32 v40, -16, v40
    v_and_b32 v42, -16, v42
    s_or_b64 s[54:55], s[54:55], s[56:57]
    v_cmp_ne_u64 vcc, s[36:37], v[40:41]
    v_cmp_ne_u64 s[44:45], s[36:37], v[42:43]
    s_or_b64 vcc, vcc, s[44:45]
    s_cbranch_vccnz L_slow1c
    s_cmp_lg_u64 s[54:55], 0
    s_cselect_b32 s49, 1, 0
    s_branch L_ok1
    L_slow1c:
    s_cmp_lt_u32 s62, 100000
    s_cbranch_scc1 L_poll1
    s_branch L_ok1
    L_end:
    """)
    open(fn,"w").write(wrap(a.text(), 256, 512, LDS_TOTAL, 240, 102))

if __name__=="__main__":
    gen("k1.s"); gen("k1s.s", stamps=True)
```

```python
import sys
src,dst=sys.argv[1],sys.argv[2]
s=open(src).read()
a=s.index("    s_load_dwordx16 s[64:79], s[0:1], 0")
b=s.index("    v_lshrrev_b32 v236, 2, v3")
common="""    v_and_b32 v3, 63, v0
    s_lshl_b32 s31, s28, 7            ; 128x
    s_lshl_b32 s30, s29, 16
    s_add_u32 s30, s30, s31
    s_and_b32 s26, s24, 3             ; w&3
    s_lshr_b32 s27, s26, 1            ; ch
    s_and_b32 s33, s26, 1             ; P / half
"""
top="""    s_load_dwordx16 s[64:79], s[0:1], 0
    s_lshr_b32 s29, s2, 3
    s_cmp_gt_u32 s29, 31
    s_cbranch_scc1 L_end
    s_getpc_b64 s[44:45]
L_pc:
    v_min_u32 v100, (L_end-L_pc)/64, v0
    v_lshlrev_b32 v100, 6, v100
    v_mov_b32 v101, s45
    v_add_co_u32 v100, vcc, s44, v100
    v_addc_co_u32 v101, vcc, 0, v101, vcc
    global_load_dword v102, v[100:101], off
    s_and_b32 s28, s2, 7
    s_lshl_b32 s34, s28, 5
    s_add_u32 s34, s34, s29
    s_lshl_b32 s34, s34, 9            ; (64x+2i)*256
    v_and_b32 v1, 0xff, v0
    v_lshl_add_u32 v1, v1, 1, s34
    v_lshrrev_b32 v21, 7, v1
    v_and_b32 v21, -2, v21
    v_lshrrev_b32 v2, 6, v0
    s_waitcnt lgkmcnt(0)
    global_load_ushort v20, v21, s[74:75]
    global_load_ushort v16, v1, s[66:67]
    global_load_ushort v17, v1, s[68:69]
    v_readfirstlane_b32 s24, v2
    s_load_dwordx2 s[20:21], s[0:1], 72
    s_cmp_ge_u32 s24, 4
    s_cbranch_scc1 L_h1
    global_load_ushort v18, v1, s[70:71]
    global_load_ushort v19, v1, s[72:73]
"""+common
s=s[:a]+top+s[b:]
h="L_h1:\n    s_setprio 2\n"
assert s.count(h)==1
s=s.replace(h,h+common)
x="""    global_load_short_d16_hi v16, v1, s[66:67]
    global_load_short_d16_hi v17, v1, s[68:69]
    global_load_short_d16_hi v20, v21, s[74:75]
"""
assert s.count(x)==1
s=s.replace(x,"")
y="    v_lshl_add_u32 v7, v97, 4, s45\n    s_waitcnt lgkmcnt(0)\n"
assert s.count(y)==1
s=s.replace(y,"    v_lshl_add_u32 v7, v97, 4, s45\n")
z="    global_load_dwordx2 v[54:55], v58, s[20:21] offset:4088\n"
assert s.count(z)==1
s=s.replace(z,"    s_waitcnt lgkmcnt(0)\n"+z)
c="    s_add_u32 s16, s20, s32\n"
assert s.count(c)==1
s=s.replace(c,"    s_waitcnt lgkmcnt(0)\n"+c)
assert s.count("s_waitcnt vmcnt(6)")==1
s=s.replace("s_waitcnt vmcnt(6)","s_waitcnt vmcnt(3)")
m="    v_mul_f32 v24, s50, v20\n"
assert s.count(m)==2
i1=s.index(m); i2=s.index(m,i1+1)
sh=lambda r:"".join(f"    v_lshlrev_b32 v{k}, 16, v{k}\n" for k in r)
s=s[:i1]+sh([20,16])+s[i1:i2].replace("    v_mul_f32 v27, s51, v16\n","    v_mul_f32 v27, s51, v16\n"+sh([17,18,19]),1)+sh([20,16,17])+s[i2:]
assert "d16_hi v1" not in s.replace("ds_write_b16_d16_hi v1","")
open(dst,'w').write(s)
```
